```python
import torch

def _softmax(x, axis=-1):
    return torch.softmax(x, dim=axis)

def _gelu(x):
    return torch.nn.functional.gelu(x, approximate='tanh')

def _silu(x):
    return torch.nn.functional.silu(x)

def _sigmoid(x):
    return torch.sigmoid(x)

def _layernorm(x, axis=-1, eps=1e-05):
    m = x.mean(dim=axis, keepdim=True)
    v = x.var(dim=axis, keepdim=True, unbiased=False)
    return (x - m) / torch.sqrt(v + eps)

def _scatter_add(tgt, idx, src, axis=0):
    return tgt.clone().index_add_(axis, idx, src)

def _segment_sum(src, seg, n):
    out = torch.zeros((n,) + src.shape[1:], dtype=src.dtype)
    return out.index_add_(0, seg, src)

def _pad(x, pw):
    flat = tuple((v for pair in reversed(pw) for v in pair))
    return torch.nn.functional.pad(x, flat)
kernel_name = 'adaLN_cond__grouped_kv_mqa__dense_activation_silu__prompt'

def setup_inputs():

    _w = lambda a: (lambda t: t.to(torch.bfloat16) if t.is_floating_point() else t)(torch.as_tensor(a))

    def _A_setup():
        B, S, D, H = (1, 2048, 512, 32)
        Dh = D // H
        return {'x': _w((lambda *s: torch.randn(*s, dtype=torch.bfloat16) * 0.05)(B, S, D)), 'wq': _w((lambda *s: torch.randn(*s, dtype=torch.bfloat16) * 0.05)(D, H * Dh)), 'wk': _w((lambda *s: torch.randn(*s, dtype=torch.bfloat16) * 0.05)(D, Dh)), 'wv': _w((lambda *s: torch.randn(*s, dtype=torch.bfloat16) * 0.05)(D, Dh)), 'wo': _w((lambda *s: torch.randn(*s, dtype=torch.bfloat16) * 0.05)(H * Dh, D))}
    _A_in = _A_setup()

    def _B_setup():
        B, S, D, F = (1, 2048, 512, 1792)
        return {'x': _w((lambda *s: torch.randn(*s, dtype=torch.bfloat16) * 0.05)(B, S, D)), 'w1': _w((lambda *s: torch.randn(*s, dtype=torch.bfloat16) * 6.4)(D, F) * D ** (-0.5)), 'w2': _w((lambda *s: torch.randn(*s, dtype=torch.bfloat16) * 0.2)(F, D) * F ** (-0.5))}
    _B_in = _B_setup()
    return {'A_x': _A_in['x'], 'A_wq': _A_in['wq'], 'A_wk': _A_in['wk'], 'A_wv': _A_in['wv'], 'A_wo': _A_in['wo'], 'B_x': _B_in['x'], 'B_w1': _B_in['w1'], 'B_w2': _B_in['w2'], 'c': _w((lambda *s: torch.randn(*s, dtype=torch.bfloat16) * 0.1)(1, 512) * 8.0), 'w_mod': _w((lambda *s: torch.randn(*s, dtype=torch.bfloat16) * 0.1)(512, 6 * 512) * 512 ** (-0.5) * 8.0)}

def reference(A_x, A_wq, A_wk, A_wv, A_wo, B_x, B_w1, B_w2, c, w_mod):

    def _A_ref(x, wq, wk, wv, wo):
        B, S, D = x.shape
        H = 32
        Dh = D // H
        q = (lambda x, *d: x.permute(*d))((x @ wq).reshape(B, S, H, Dh), 0, 2, 1, 3)
        k = x @ wk
        v = x @ wv
        scores = torch.einsum('bhqd,bkd->bhqk', q, k) * Dh ** (-0.5)
        p = _softmax(scores, axis=-1)
        o = torch.einsum('bhqk,bkd->bhqd', p, v)
        return (lambda x, *d: x.permute(*d))(o, 0, 2, 1, 3).reshape(B, S, H * Dh) @ wo

    def _B_ref(x, w1, w2):
        h = torch.einsum('bsd,df->bsf', x, w1)
        h = _silu(h)
        out = torch.einsum('bsf,fd->bsd', h, w2)
        return out
    x = A_x
    mod = (_silu(c) @ w_mod).reshape(c.shape[0], 6, 1, -1)
    sa, ca, ga, sb, cb, gb = (mod[:, 0].clone(), mod[:, 1].clone(), mod[:, 2].clone(), mod[:, 3].clone(), mod[:, 4].clone(), mod[:, 5].clone())
    h = _layernorm(x, axis=-1) * (1 + ca) + sa
    x = x + ga * _A_ref(h, A_wq, A_wk, A_wv, A_wo)
    h = _layernorm(x, axis=-1) * (1 + cb) + sb
    x = x + gb * _B_ref(h, B_w1, B_w2)
    return x
```

```python
import re

TRANS = ("v_exp_f32", "v_log_f32", "v_rcp_f32", "v_rsq_f32", "v_sqrt_f32", "v_sin_f32", "v_cos_f32",
         "v_exp_f16", "v_rcp_f16", "v_rcp_iflag_f32")

_reg_re = re.compile(r"^(-?)(abs\()?([vas])(\d+|\[(\d+):(\d+)\])\)?$")


def regs_of(op):
    op = op.strip()
    if op.startswith("|") and op.endswith("|"):
        op = op[1:-1]
    if op.startswith("-|") and op.endswith("|"):
        op = op[2:-1]
    if op in ("vcc",):
        return {("s", 106), ("s", 107)}
    if op == "vcc_lo":
        return {("s", 106)}
    if op == "vcc_hi":
        return {("s", 107)}
    if op == "exec":
        return {("s", 126), ("s", 127)}
    if op == "exec_lo":
        return {("s", 126)}
    if op == "exec_hi":
        return {("s", 127)}
    if op == "m0":
        return {("s", 124)}
    m = _reg_re.match(op)
    if not m:
        return set()
    k = m.group(3)
    if m.group(5) is not None:
        return {(k, i) for i in range(int(m.group(5)), int(m.group(6)) + 1)}
    return {(k, int(m.group(4)))}


class Ins:
    __slots__ = ("text", "mn", "ops", "mods", "dst", "src", "kind", "passes", "srcC", "srcAB", "ws", "store_data")

    def __init__(self, text):
        self.text = text
        t = text.split(";")[0].strip()
        self.mn = None
        self.kind = "other"
        self.dst = set()
        self.src = set()
        self.passes = 0
        self.srcC = set()
        self.srcAB = set()
        self.ws = 1
        self.store_data = set()
        self.mods = ""
        if not t or t.endswith(":") or t.startswith("."):
            self.kind = "label" if t.endswith(":") else "dir"
            self.ws = 0
            return
        parts = t.split(None, 1)
        mn = parts[0]
        self.mn = mn
        rest = parts[1] if len(parts) > 1 else ""
        ops = []
        cur = ""
        depth = 0
        for ch in rest:
            if ch in "[(":
                depth += 1
            if ch in "])":
                depth -= 1
            if ch == "," and depth == 0:
                ops.append(cur.strip())
                cur = ""
            else:
                cur += ch
        if cur.strip():
            ops.append(cur.strip())
        if ops:
            last = ops[-1].split()
            if len(last) > 1:
                ops[-1] = last[0]
                self.mods = " ".join(last[1:])
        self.ops = ops
        R = [regs_of(o) for o in ops]
        if mn == "s_nop":
            self.ws = int(ops[0], 0) + 1
            self.kind = "nop"
        elif mn.startswith("v_mfma"):
            self.kind = "mfma"
            self.passes = 8 if "32x32x16" in mn else 4 if "16x16x32" in mn else 16
            self.dst = R[0]
            self.srcAB = R[1] | R[2]
            self.srcC = R[3]
            self.src = self.srcAB | self.srcC
        elif mn.startswith("v_cmp"):
            self.kind = "valu"
            self.dst = R[0]
            self.src = set().union(*R[1:])
        elif mn.startswith("v_readfirstlane") or mn.startswith("v_readlane"):
            self.kind = "valu"
            self.dst = R[0]
            self.src = set().union(*R[1:])
        elif mn.startswith("v_permlane") and "swap" in mn:
            self.kind = "valu"
            self.dst = R[0] | R[1]
            self.src = R[0] | R[1]
        elif mn.startswith("v_add_co") or mn.startswith("v_sub_co") or mn.startswith("v_addc_co") or mn.startswith("v_subb_co"):
            self.kind = "valu"
            self.dst = R[0] | R[1]
            self.src = set().union(*R[2:])
        elif mn.startswith("v_"):
            self.kind = "valu"
            self.dst = R[0]
            self.src = set().union(*R[1:]) if len(R) > 1 else set()
            if mn.startswith("v_fmac") or mn.startswith("v_dot2c") or "UNUSED_PRESERVE" in self.mods or mn.startswith("v_writelane") or "_dpp" in mn:
                self.src |= R[0]
            if mn.startswith("v_cndmask") and len(ops) == 3:
                self.src |= regs_of("vcc")
        elif mn.startswith("buffer_load") or mn.startswith("global_load"):
            self.kind = "vmem"
            if "lds" in self.mods.split() or "_lds_" in mn:
                self.src = set().union(*R) | regs_of("m0")
                self.kind = "vmem_lds"
            else:
                self.dst = R[0]
                self.src = set().union(*R[1:])
                if "d16" in mn:
                    self.src |= R[0]
        elif mn.startswith("buffer_store") or mn.startswith("global_store"):
            self.kind = "vmem"
            self.src = set().union(*R)
            if "x4" in mn or "x3" in mn:
                self.store_data = R[0] if mn.startswith("buffer") else R[1]
        elif mn.startswith("buffer_atomic") or mn.startswith("global_atomic"):
            self.kind = "vmem"
            self.src = set().union(*R)
            if "sc0" in self.mods.split():
                self.dst = R[0]
        elif mn.startswith("buffer_"):
            self.kind = "vmem"
        elif mn.startswith("ds_read") or mn.startswith("ds_bpermute") or mn.startswith("ds_swizzle") or mn.startswith("ds_permute"):
            self.kind = "ds"
            self.dst = R[0]
            self.src = set().union(*R[1:])
        elif mn.startswith("ds_"):
            self.kind = "ds"
            self.src = set().union(*R)
        elif mn.startswith("s_load") or mn.startswith("s_memtime") or mn.startswith("s_memrealtime") or mn.startswith("s_buffer_load"):
            self.kind = "smem"
            self.dst = R[0]
            self.src = set().union(*R[1:]) if len(R) > 1 else set()
        elif mn.startswith("s_cbranch") or mn == "s_branch" or mn == "s_endpgm":
            self.kind = "branch"
        elif mn.startswith("s_cmp") or mn.startswith("s_waitcnt") or mn in ("s_barrier", "s_sleep", "s_setprio"):
            self.kind = "salu"
            self.src = set().union(*R) if R else set()
        elif mn.startswith("s_"):
            self.kind = "salu"
            self.dst = R[0] if R else set()
            self.src = set().union(*R[1:]) if len(R) > 1 else set()
            if "saveexec" in mn:
                self.dst |= regs_of("exec")
        else:
            raise ValueError("unknown instruction: " + text)

    def is_trans(self):
        return self.mn is not None and any(self.mn.startswith(t) for t in TRANS)

    def is_dpp(self):
        return self.mn is not None and ("_dpp" in self.mn or "quad_perm" in self.mods or "row_" in self.mods)

    def is_sdwa(self):
        return self.mn is not None and ("_sdwa" in self.mn or "op_sel" in self.mods)


def vec(rs):
    return {r for r in rs if r[0] in "va"}


def sca(rs):
    return {r for r in rs if r[0] == "s"}


def need(p, c):
    n = 0
    if p.kind == "valu":
        pv = vec(p.dst)
        ps = sca(p.dst)
        if c.kind == "mfma" and pv & c.src:
            n = max(n, 2)
        if c.kind == "valu":
            if p.is_trans() and not c.is_trans() and pv & c.src:
                n = max(n, 1)
            if p.is_trans() and c.is_trans() and pv & c.src:
                n = max(n, 1)
            if c.mn.startswith("v_permlane") and pv & c.src:
                n = max(n, 2)
            if c.is_dpp() and pv & c.src:
                n = max(n, 2)
            if (c.mn.startswith("v_readfirstlane") or c.mn.startswith("v_readlane")) and pv & c.src:
                n = max(n, 1)
            if ps & c.src:
                n = max(n, 4 if (c.mn.startswith("v_readlane") or c.mn.startswith("v_writelane")) else 2)
            if p.is_sdwa() and pv & (c.src | c.dst):
                n = max(n, 1)
        if c.kind in ("vmem", "vmem_lds") and ps & c.src:
            n = max(n, 5)
        if c.kind == "mfma" and ps & regs_of("exec"):
            n = max(n, 4)
    if p.kind == "valu" and p.mn.startswith("v_dot"):
        pv = vec(p.dst)
        if c.mn == p.mn:
            ab = set().union(*[regs_of(o) for o in c.ops[1:3]])
            if pv & ab:
                n = max(n, 3)
        elif pv & (c.src | c.dst):
            n = max(n, 3)
    if p.kind == "mfma":
        d = p.dst
        big = {4: 8, 8: 12, 16: 20}[p.passes]
        if c.kind == "mfma":
            if d & c.srcAB:
                n = max(n, big)
            if d & c.srcC:
                if d == c.srcC and p.passes == c.passes:
                    pass
                else:
                    n = max(n, big - 2)
            elif d & c.dst:
                n = max(n, big - 2)
        elif c.kind in ("valu", "vmem", "vmem_lds", "ds"):
            if d & (c.src | c.dst):
                n = max(n, big)
        if c.kind == "valu" and p.srcC & c.dst:
            n = max(n, {4: 3, 8: 7, 16: 15}[p.passes])
    if p.kind == "vmem" and p.store_data:
        if c.kind == "valu" and p.store_data & c.dst:
            n = max(n, 2)
        elif p.store_data & c.dst:
            n = max(n, 1)
    if p.kind == "salu" and ("s", 124) in p.dst:
        if c.kind == "vmem_lds" or (c.mn or "").startswith("ds_write_addtid"):
            n = max(n, 1)
    return n


def hazard_fix(lines, window=24, verbose=False):
    out = []
    for t in lines:
        c = Ins(t)
        if c.mn is not None and c.kind not in ("nop",):
            dist = 0
            req = 0
            for p in reversed(out):
                if dist >= window:
                    break
                if p.mn is not None:
                    r = need(p, c) - dist
                    if r > req:
                        req = r
                dist += p.ws
            while req > 0:
                k = min(req, 16)
                out.append(Ins(f"s_nop {k-1}"))
                if verbose:
                    print("inserted s_nop", k - 1, "before", t)
                req -= k
        out.append(c)
    return [i.text for i in out]


def loop_wrap_nops(body):
    fixed = hazard_fix(body)
    twice = hazard_fix(fixed + fixed)
    extra = len(twice) - 2 * len(fixed)
    if extra == 0:
        return fixed, 0
    ins = [Ins(t) for t in fixed]
    worst = 0
    n = len(ins)
    pre = 0
    for ci in range(n):
        c = ins[ci]
        if c.mn is None:
            continue
        dist = pre
        for p in reversed(ins):
            if dist >= 24:
                break
            if p.mn is not None:
                worst = max(worst, need(p, c) - dist)
            dist += p.ws
        pre += c.ws
        if pre >= 24:
            break
    return fixed, worst


class Kernel:
    def __init__(self, name, grid, block, lds=0):
        self.name = name
        self.grid = grid
        self.block = block
        self.lds = lds
        self.lines = []
        self.nv = 0
        self.na = 0
        self.ns = 0
        self._lbl = 0

    def e(self, s):
        for l in s.strip().split("\n"):
            l = l.strip()
            if l:
                self.lines.append(l)

    def label(self, base="L"):
        self._lbl += 1
        return f"{self.name}_{base}{self._lbl}"

    def loop(self, body_lines, tail_lines):
        full = body_lines + tail_lines
        fixed, w = loop_wrap_nops(full)
        if w > 0:
            br = fixed[-1]
            fixed = fixed[:-1] + [f"s_nop {w-1}", br]
        self.lines += fixed

    def finish(self, accum_offset=None):
        lines = hazard_fix(self.lines)
        mv = ma = ms = -1
        for t in lines:
            i = Ins(t)
            for (k, n) in i.dst | i.src:
                if k == "v":
                    mv = max(mv, n)
                elif k == "a":
                    ma = max(ma, n)
                elif k == "s" and n < 102:
                    ms = max(ms, n)
        nv = mv + 1
        acc = (nv + 3) // 4 * 4
        if accum_offset:
            assert accum_offset >= acc, (accum_offset, acc)
            acc = accum_offset
        acc = max(acc, 4)
        nfv = acc + ma + 1 if ma >= 0 else max(nv, 1)
        self.info = dict(vgpr=nv, agpr=ma + 1, sgpr=ms + 1, nfv=nfv, acc=acc, ninstr=len(lines))
        code = f".p2align 8\n.globl {self.name}\n.type {self.name},@function\n{self.name}:\n" + "\n".join(
            ("" if l.endswith(":") else "    ") + l for l in lines) + "\n"
        desc = f""".p2align 6
.amdhsa_kernel {self.name}
  .amdhsa_next_free_vgpr {nfv}
  .amdhsa_next_free_sgpr {max(ms + 1, 16)}
  .amdhsa_accum_offset {acc}
  .amdhsa_group_segment_fixed_size 0
  .amdhsa_kernarg_size 104
  .amdhsa_user_sgpr_count 2
  .amdhsa_user_sgpr_kernarg_segment_ptr 1
  .amdhsa_system_sgpr_workgroup_id_x 1
.end_amdhsa_kernel
"""
        return code, desc


def build_file(kernels, launches, header_comment=""):
    byname = {k.name: k for k in kernels}
    hdr = header_comment
    for n in launches:
        k = byname[n]
        hdr += f"; @launch kernel={k.name} grid=({k.grid},1,1) block=({k.block},1,1) lds={k.lds}\n"
    codes = []
    descs = []
    for k in kernels:
        c, d = k.finish(getattr(k, "accum_offset", None))
        codes.append(c)
        descs.append(d)
    return hdr + '.amdgcn_target "amdgcn-amd-amdhsa--gfx950"\n.text\n' + "".join(codes) + '.section .rodata,"a"\n' + "".join(descs)
```

```python
import sys, os
sys.path.insert(0, os.path.dirname(__file__))
from asmlib import *

NAME = "adaLN_cond__grouped_kv_mqa__dense_activation_silu__prompt_kernel"
TS = int(os.environ.get("TS", "0"))
MAP = int(os.environ.get("MAP", "0"))

WS_MOD = 0x0
WS_MODB = 0x4000
WS_DONE = 0x8000
WS_KV = 0x10000
WS_O = 0x100000
WS_Y = 0x300000
WS_ST = 0x500000
WS_F = 0x600000
WS_WO = 0x1000000
WS_W1 = 0x1100000
WS_W2 = 0x1300000
WS_TS = 0x2000000

L_WQ = 0
L_WKV = 65536
L_H = 98304
L_PREP = 98304
L_STAT = 118784
L_REDA = 122880
L_KV = 256
LDS_BYTES = 163840

sX, sWQ, sWK, sWV, sWO, sW1, sW2, sC, sWM, sOUT, sDBG, sWS = 4, 6, 8, 10, 12, 16, 18, 20, 22, 24, 26, 28
RWS, RX, RA, RB = 32, 36, 40, 44
sW, sM, sG = 48, 49, 50
sT = 51
sCNT = 60
sMASKV = 62
sTS = 64
sSAVE = 96
POLL_MAX = 1 << 18

k = Kernel(NAME, 256, 256, LDS_BYTES)
e = k.e
_ts = [0]


def srd(r):
    return f"s[{r}:{r+3}]"


def vr(a, n):
    return f"v[{a}:{a+n-1}]"


def ar(a, n):
    return f"a[{a}:{a+n-1}]"


def mk_srd(r, p, size):
    e(f"s_mov_b32 s{r}, s{p}\ns_mov_b32 s{r+1}, s{p+1}\ns_mov_b32 s{r+2}, {size}\ns_mov_b32 s{r+3}, 0x20000")


def ts():
    if TS:
        i = _ts[0]
        _ts[0] += 1
        assert i < 16
        e(f"s_memrealtime s[{sTS+2*i}:{sTS+2*i+1}]")


def barrier():
    e("s_waitcnt lgkmcnt(0)\ns_barrier")


def poll_check(regs, tmp, retry_label):
    regs = list(regs)
    e(f"v_max_u32 v{tmp}, v{regs[0]}, v{regs[1]}")
    i = 2
    while i + 1 < len(regs):
        e(f"v_max3_u32 v{tmp}, v{tmp}, v{regs[i]}, v{regs[i+1]}")
        i += 2
    if i < len(regs):
        e(f"v_max_u32 v{tmp}, v{tmp}, v{regs[i]}")
    ok = k.label("ok")
    e(f"v_cmp_eq_u32 vcc, -1, v{tmp}")
    e(f"s_cbranch_vccz {ok}")
    e(f"s_add_u32 s{sCNT}, s{sCNT}, 1\ns_cmp_lt_u32 s{sCNT}, {POLL_MAX}\ns_cbranch_scc1 {retry_label}")
    e(f"{ok}:")


END = k.label("end")
e(f"s_cmp_ge_u32 s2, 256\ns_cbranch_scc1 {END}")
e("s_load_dwordx16 s[4:19], s[0:1], 0\ns_load_dwordx8 s[20:27], s[0:1], 64\ns_load_dwordx2 s[28:29], s[0:1], 96")
ts()
vTID, vLANE, vL16, vADR = 0, 1, 2, 3
e(f"v_and_b32 v{vLANE}, 63, v0\nv_lshlrev_b32 v{vL16}, 4, v{vLANE}\nv_lshrrev_b32 v4, 6, v0")
e(f"v_readfirstlane_b32 s{sW}, v4")
if MAP == 0:
    e(f"s_and_b32 s{sM}, s2, 7\ns_lshr_b32 s{sG}, s2, 3")
else:
    e(f"s_lshr_b32 s{sM}, s2, 3\ns_and_b32 s{sM}, s{sM}, 7\ns_and_b32 s{sG}, s2, 7\ns_lshr_b32 s{sT}, s2, 6\ns_lshl_b32 s{sT}, s{sT}, 3\ns_add_u32 s{sG}, s{sG}, s{sT}")
e(f"s_mov_b32 s{sCNT}, 0")
e(f"s_mov_b32 s{sMASKV}, 0xffff0000\ns_mov_b32 s{sMASKV+1}, 0xffff0000")
e("v_mov_b32 v28, -1\nv_mov_b32 v29, -1\nv_mov_b32 v30, -1\nv_mov_b32 v31, -1")
e("s_waitcnt lgkmcnt(0)")
mk_srd(RWS, sWS, 0x10000000)
mk_srd(RX, sX, 2048 * 512 * 2)

L = k.label("noclean")
e(f"s_cmp_lg_u32 s2, 0\ns_cbranch_scc1 {L}\ns_cmp_lg_u32 s{sW}, 3\ns_cbranch_scc1 {L}")
for i in range(4):
    e(f"buffer_store_dwordx4 v[28:31], v{vL16}, {srd(RWS)}, 0 offen offset:{1024*i} sc1")
mk_srd(RA, sDBG, 256)
e("s_waitcnt vmcnt(0)\nv_mov_b32 v4, 1\nv_mov_b32 v5, 0")
e(f"buffer_store_dword v4, v5, {srd(RA)}, 0 offen sc1")
e(f"{L}:")

e(f"s_and_b32 s{sT}, s{sM}, 1\ns_lshl_b32 s{sT+1}, s{sG}, 1\ns_add_u32 s{sT+1}, s{sT+1}, s{sT}\ns_lshl_b32 s{sT+1}, s{sT+1}, 11\ns_add_u32 s{sT+1}, s{sT+1}, {WS_KV}")
sKVT = 61
e(f"s_mov_b32 s{sKVT}, s{sT+1}")
L = k.label("noearly")
L2 = k.label("nokvp")
e(f"s_cmp_lg_u32 s{sW}, 0\ns_cbranch_scc1 {L}")
e(f"s_cmp_ge_u32 s{sM}, 4\ns_cbranch_scc1 {L2}")
e(f"s_cmp_lt_u32 s{sM}, 2\ns_cselect_b32 s{sT}, 1024, 0\ns_add_u32 s{sT}, s{sT}, s{sKVT}")
e(f"buffer_store_dwordx4 v[28:31], v{vL16}, {srd(RWS)}, s{sT} offen sc1")
e(f"{L2}:")
e(f"s_lshl_b32 s{sT}, s2, 2\ns_add_u32 s{sT}, s{sT}, {WS_DONE}\nv_mov_b32 v5, 0")
e(f"buffer_store_dword v28, v5, {srd(RWS)}, s{sT} offen sc1")
e(f"{L}:")

mk_srd(RA, sC, 1024)
mk_srd(RB, sWM, 512 * 3072 * 2)
vC, vU0, vU1, vR0, vR1 = 32, 34, 36, 40, 44
e(f"v_lshlrev_b32 v4, 2, v0\nbuffer_load_dword v{vC}, v4, {srd(RA)}, 0 offen")
e("v_mul_u32_u24 v5, 12288, v0")
sCU, sCR = 52, 53
e(f"s_and_b32 s{sT}, s2, 7\ns_lshr_b32 s54, s2, 3\ns_lshl_b32 s{sCU}, s{sT}, 8\ns_lshl_b32 s55, s54, 3\ns_add_u32 s{sCU}, s{sCU}, s55")
e(f"s_lshl_b32 s{sCR}, s{sCU}, 1\ns_add_u32 s{sCR}, s{sCR}, 2048")
e(f"s_add_u32 s55, s{sCU}, 6144")
e(f"buffer_load_dwordx2 {vr(vU0,2)}, v5, {srd(RB)}, s{sCU} offen")
e(f"buffer_load_dwordx2 {vr(vU1,2)}, v5, {srd(RB)}, s55 offen")
vXP, vXN = 64, 128
e(f"v_and_b32 v6, 31, v{vLANE}\nv_lshlrev_b32 v6, 10, v6\nv_lshrrev_b32 v7, 5, v{vLANE}\nv_lshl_add_u32 v6, v7, 4, v6")
for s in range(2):
    e(f"s_and_b32 s{sT}, s{sM}, 1\ns_xor_b32 s{sT}, s{sT}, {s}\ns_lshl_b32 s{sT}, s{sT}, 15\ns_lshl_b32 s55, s{sG}, 16\ns_add_u32 s{sT}, s{sT}, s55\ns_lshl_b32 s55, s{sW}, 8\ns_add_u32 s{sT}, s{sT}, s55")
    for kk in range(8):
        e(f"buffer_load_dwordx4 {vr(vXP+32*s+4*kk,4)}, v6, {srd(RX)}, s{sT} offen offset:{32*kk}")
e(f"s_add_u32 s55, s{sCR}, 6144")
e(f"buffer_load_dwordx4 {vr(vR0,4)}, v5, {srd(RB)}, s{sCR} offen")
e(f"buffer_load_dwordx4 {vr(vR1,4)}, v5, {srd(RB)}, s55 offen")
mk_srd(RA, sWK, 512 * 16 * 2)
mk_srd(RB, sWV, 512 * 16 * 2)
e(f"s_lshl_b32 s{sT}, s{sW}, 12\ns_lshl_b32 s55, s{sW}, 13\ns_add_u32 s55, s55, {L_WKV}\ns_mov_b32 m0, s55")
for i in range(4):
    e(f"buffer_load_dwordx4 v{vL16}, {srd(RA)}, s{sT} offen offset:{1024*i} lds")
e("s_add_u32 s55, s55, 4096\ns_mov_b32 m0, s55")
for i in range(4):
    e(f"buffer_load_dwordx4 v{vL16}, {srd(RB)}, s{sT} offen offset:{1024*i} lds")
mk_srd(RA, sWQ, 512 * 512 * 2)
e(f"v_lshrrev_b32 v7, 3, v{vLANE}\nv_lshlrev_b32 v7, 10, v7\nv_and_b32 v8, 7, v{vLANE}\nv_lshrrev_b32 v9, 2, v{vLANE}\nv_and_b32 v9, 4, v9\nv_xor_b32 v8, v8, v9\nv_lshl_add_u32 v7, v8, 4, v7")
e(f"s_lshl_b32 s{sT}, s{sW}, 17\ns_lshl_b32 s55, s{sM}, 7\ns_add_u32 s{sT}, s{sT}, s55\ns_lshl_b32 s55, s{sW}, 14")
for q in range(16):
    e(f"s_mov_b32 m0, s55\ns_nop 0\nbuffer_load_dwordx4 v7, {srd(RA)}, s{sT} offen lds")
    if q < 15:
        e(f"s_add_u32 s{sT}, s{sT}, 8192\ns_add_u32 s55, s55, 1024")
aPL, aPT = 160, 176
sPRB, sPDST, sPKS = 56, 57, 58
e(f"s_lshl_b32 s{sT}, s2, 2\ns_add_u32 s{sT}, s{sT}, s{sW}")
Lw1, Lw2, Lpd = k.label("pw1"), k.label("pw2"), k.label("pdone")
e(f"s_cmp_ge_u32 s{sT}, 576\ns_cbranch_scc1 {Lw2}\ns_cmp_ge_u32 s{sT}, 128\ns_cbranch_scc1 {Lw1}")
mk_srd(RA, sWO, 512 * 512 * 2)
e(f"s_lshr_b32 s54, s{sT}, 2\ns_and_b32 s55, s{sT}, 3\ns_mov_b32 s{sPRB}, 1024\ns_mov_b32 s{sPDST}, {WS_WO}\ns_mov_b32 s{sPKS}, {32*1024}\ns_branch {Lpd}")
e(f"{Lw1}:")
mk_srd(RA, sW1, 512 * 1792 * 2)
e(f"s_sub_u32 s{sT}, s{sT}, 128\ns_and_b32 s54, s{sT}, 31\ns_lshr_b32 s55, s{sT}, 5\ns_mov_b32 s{sPRB}, 3584\ns_mov_b32 s{sPDST}, {WS_W1}\ns_mov_b32 s{sPKS}, {32*1024}\ns_branch {Lpd}")
e(f"{Lw2}:")
mk_srd(RA, sW2, 512 * 1792 * 2)
e(f"s_sub_u32 s{sT}, s{sT}, 576\ns_lshr_b32 s54, s{sT}, 2\ns_and_b32 s55, s{sT}, 3\ns_mov_b32 s{sPRB}, 1024\ns_mov_b32 s{sPDST}, {WS_W2}\ns_mov_b32 s{sPKS}, {112*1024}")
e(f"{Lpd}:")
e(f"s_mul_i32 s{sT}, s55, s{sPKS}\ns_lshl_b32 s{sT}, s{sT}, 2\ns_add_u32 s{sPDST}, s{sPDST}, s{sT}\ns_lshl_b32 s{sT}, s54, 10\ns_add_u32 s{sPDST}, s{sPDST}, s{sT}")
e(f"s_mul_i32 s{sT}, s54, s{sPRB}\ns_lshl_b32 s{sT}, s{sT}, 4\ns_lshl_b32 s55, s55, 8\ns_add_u32 s{sT}, s{sT}, s55\ns_lshl_b32 s55, s{sPRB}, 2")
e(f"v_lshrrev_b32 v8, 4, v{vLANE}\nv_and_b32 v9, 15, v{vLANE}\nv_lshlrev_b32 v9, 4, v9\nv_mad_u32_u24 v10, v8, s{sPRB}, v9")
for i in range(4):
    e(f"buffer_load_dwordx4 {ar(aPL+4*i,4)}, v10, {srd(RA)}, s{sT} offen")
    if i < 3:
        e(f"s_add_u32 s{sT}, s{sT}, s55")
NLOAD_AFTER_U = 16 + 2 + 8 + 16 + 4

e(f"s_waitcnt vmcnt({NLOAD_AFTER_U})")
ts()
vS = 33
e(f"v_lshlrev_b32 v12, 16, v{vC}\nv_and_b32 v13, 0xffff0000, v{vC}")
e("v_mul_f32 v14, 0xbfb8aa3b, v12\nv_mul_f32 v15, 0xbfb8aa3b, v13\nv_exp_f32 v14, v14\nv_exp_f32 v15, v15")
e("v_add_f32 v14, 1.0, v14\nv_add_f32 v15, 1.0, v15\nv_rcp_f32 v14, v14\nv_rcp_f32 v15, v15")
e(f"v_mul_f32 v12, v12, v14\nv_mul_f32 v13, v13, v15\nv_cvt_pk_bf16_f32 v{vS}, v12, v13")
e("s_mov_b32 s54, 0x05040100\ns_mov_b32 s55, 0x07060302")


def moddot(r0, r1, nd, acc):
    for d in range(nd):
        e(f"v_perm_b32 v12, v{r1+d}, v{r0+d}, s54\nv_perm_b32 v13, v{r1+d}, v{r0+d}, s55")
        e(f"v_dot2_f32_bf16 v{acc+2*d}, v12, v{vS}, 0\nv_dot2_f32_bf16 v{acc+2*d+1}, v13, v{vS}, 0")


def wave_reduce(acc, n):
    for mod in ("row_shr:1 row_mask:0xf", "row_shr:2 row_mask:0xf", "row_shr:4 row_mask:0xf", "row_shr:8 row_mask:0xf",
                "row_bcast:15 row_mask:0xa", "row_bcast:31 row_mask:0xc"):
        for i in range(n):
            e(f"v_add_f32_dpp v{acc+i}, v{acc+i}, v{acc+i} {mod} bank_mask:0xf")


vAC = 48
moddot(vU0, vU1, 2, vAC)
wave_reduce(vAC, 4)
e(f"s_lshl_b32 s{sT}, s{sW}, 6\ns_add_u32 s{sT}, s{sT}, {L_REDA}\nv_mov_b32 v11, s{sT}")
e("s_mov_b32 exec_lo, 0\ns_mov_b32 exec_hi, 0x80000000")
e(f"ds_write_b128 v11, {vr(vAC,4)}")
e("s_mov_b64 exec, -1")
barrier()


def round_bf16(regs, tmp):
    for i in range(0, len(regs), 2):
        e(f"v_cvt_pk_bf16_f32 v{tmp+i//2}, v{regs[i]}, v{regs[i+1]}")
    for i in range(0, len(regs), 2):
        e(f"v_lshlrev_b32 v{regs[i]}, 16, v{tmp+i//2}\nv_and_b32 v{regs[i+1]}, 0xffff0000, v{tmp+i//2}")


L = k.label("nopub")
e(f"s_cmp_lg_u32 s{sW}, 0\ns_cbranch_scc1 {L}")
e(f"v_mov_b32 v11, {L_REDA}")
for i in range(4):
    e(f"ds_read_b128 {vr(12+4*i,4)}, v11 offset:{64*i}")
e("s_waitcnt lgkmcnt(0)")
for i in range(4):
    e(f"v_add_f32 v{12+i}, v{12+i}, v{16+i}\nv_add_f32 v{20+i}, v{20+i}, v{24+i}")
for i in range(4):
    e(f"v_add_f32 v{12+i}, v{12+i}, v{20+i}")
round_bf16([12, 13, 14, 15], 16)
e(f"s_and_b32 s{sT}, s2, 4\ns_cmp_lg_u32 s{sT}, 0\ns_cselect_b32 s{sT}, 1.0, 0")
for i in range(4):
    e(f"v_add_f32 v{12+i}, s{sT}, v{12+i}")
round_bf16([12, 13, 14, 15], 16)
mk_srd(RA, sDBG, 256)
Lp = k.label("pf0")
Lok = k.label("pf0ok")
e("v_mov_b32 v11, 0")
e(f"{Lp}:")
e(f"buffer_load_dword v18, v11, {srd(RA)}, 0 offen sc1\ns_waitcnt vmcnt(0)\nv_cmp_ne_u32 vcc, 0, v18\ns_cbranch_vccnz {Lok}")
e(f"s_add_u32 s{sCNT}, s{sCNT}, 1\ns_cmp_lt_u32 s{sCNT}, {POLL_MAX}\ns_cbranch_scc1 {Lp}")
e(f"{Lok}:")
e(f"s_lshl_b32 s{sT}, s{sCU}, 1")
e("s_mov_b64 exec, 1")
e(f"buffer_store_dwordx4 v[12:15], v11, {srd(RWS)}, s{sT} offen sc1")
e("s_mov_b64 exec, -1")
e(f"{L}:")
ts()

e("s_waitcnt vmcnt(0)")
e("v_mov_b32 v12, 0x3f803f80")
vST = 16
for i in range(32):
    for s in range(2):
        x = vXP + 32 * s + i
        c0 = "0" if i == 0 else f"v{vST+2*s}"
        c1 = "0" if i == 0 else f"v{vST+2*s+1}"
        e(f"v_dot2_f32_bf16 v{vST+2*s}, v{x}, v12, {c0}\nv_dot2_f32_bf16 v{vST+2*s+1}, v{x}, v{x}, {c1}")
e(f"s_lshl_b32 s{sT}, s{sW}, 10\ns_add_u32 s{sT}, s{sT}, {L_STAT}\nv_lshl_add_u32 v11, v{vLANE}, 3, s{sT}")
e(f"ds_write_b64 v11, {vr(vST,2)}\nds_write_b64 v11, {vr(vST+2,2)} offset:512")
moddot(vR0, vR1, 4, vAC)
wave_reduce(vAC, 8)
e(f"s_lshl_b32 s{sT}, s{sW}, 6\ns_add_u32 s{sT}, s{sT}, {L_REDA}\nv_mov_b32 v11, s{sT}")
e("s_mov_b32 exec_lo, 0\ns_mov_b32 exec_hi, 0x80000000")
e(f"ds_write_b128 v11, {vr(vAC,4)} offset:16\nds_write_b128 v11, {vr(vAC+4,4)} offset:32")
e("s_mov_b64 exec, -1")
e(f"v_lshrrev_b32 v8, 4, v{vLANE}\nv_and_b32 v9, 15, v{vLANE}\nv_mul_u32_u24 v8, 320, v8\nv_lshl_add_u32 v8, v9, 4, v8")
e(f"s_mul_i32 s{sT}, s{sW}, 5120\ns_add_u32 s{sT}, s{sT}, {L_PREP}\nv_add_u32 v8, s{sT}, v8")
for i in range(4):
    e(f"ds_write_b128 v8, {ar(aPL+4*i,4)} offset:{1280*i}")
e(f"v_lshrrev_b32 v20, 5, v{vLANE}\nv_bfe_u32 v21, v{vLANE}, 4, 1\nv_bfe_u32 v22, v{vLANE}, 2, 2")
e(f"v_and_b32 v23, 1, v{vLANE}\nv_lshlrev_b32 v23, 1, v23\nv_bfe_u32 v24, v{vLANE}, 1, 1\nv_or_b32 v23, v23, v24")
e("v_lshl_add_u32 v24, v20, 3, v22")
e(f"v_mul_u32_u24 v9, 320, v24\nv_lshl_add_u32 v9, v21, 5, v9\nv_lshl_add_u32 v9, v23, 3, v9\nv_add_u32 v9, s{sT}, v9")
e("s_waitcnt lgkmcnt(0)")
for ft in range(4):
    for i in range(2):
        e(f"ds_read_b64_tr_b16 {ar(aPT+4*ft+2*i,2)}, v9 offset:{1280*i+64*ft}")
aWKV = 128
e(f"s_lshl_b32 s{sT}, s{sW}, 13\ns_add_u32 s{sT}, s{sT}, {L_WKV}")
e(f"v_lshlrev_b32 v10, 5, v24\nv_lshl_add_u32 v10, v21, 12, v10\nv_lshl_add_u32 v10, v23, 3, v10\nv_add_u32 v10, s{sT}, v10")
for kk in range(8):
    for i in range(2):
        e(f"ds_read_b64_tr_b16 {ar(aWKV+4*kk+2*i,2)}, v10 offset:{512*kk+128*i}")
e("s_waitcnt lgkmcnt(0)")
e(f"s_mov_b32 s{sT}, s{sPDST}")
for ft in range(4):
    e(f"buffer_store_dwordx4 {ar(aPT+4*ft,4)}, v{vL16}, {srd(RWS)}, s{sT} offen sc1")
    if ft < 3:
        e(f"s_add_u32 s{sT}, s{sT}, s{sPKS}")
sOY, sSTO, sFO = 56, 57, 58
e(f"s_lshl_b32 s{sOY}, s{sG}, 16\ns_lshr_b32 s{sT}, s{sW}, 1\ns_lshl_b32 s{sT}, s{sT}, 15\ns_add_u32 s{sOY}, s{sOY}, s{sT}")
e(f"s_lshl_b32 s{sT}, s{sM}, 12\ns_add_u32 s{sOY}, s{sOY}, s{sT}\ns_and_b32 s{sT}, s{sW}, 1\ns_lshl_b32 s{sT}, s{sT}, 11\ns_add_u32 s{sOY}, s{sOY}, s{sT}")
e(f"s_add_u32 s{sT}, s{sOY}, {WS_O}")
e(f"buffer_store_dwordx4 v[28:31], v{vL16}, {srd(RWS)}, s{sT} offen sc1\nbuffer_store_dwordx4 v[28:31], v{vL16}, {srd(RWS)}, s{sT} offen offset:1024 sc1")
e(f"s_add_u32 s{sT}, s{sOY}, {WS_Y}")
e(f"buffer_store_dwordx4 v[28:31], v{vL16}, {srd(RWS)}, s{sT} offen sc1\nbuffer_store_dwordx4 v[28:31], v{vL16}, {srd(RWS)}, s{sT} offen offset:1024 sc1")
e(f"s_lshr_b32 s{sSTO}, s{sOY}, 3\ns_add_u32 s{sSTO}, s{sSTO}, {WS_ST}\nv_lshlrev_b32 v11, 2, v{vLANE}")
e(f"buffer_store_dword v28, v11, {srd(RWS)}, s{sSTO} offen sc1")
e(f"s_mul_i32 s{sFO}, s{sG}, 229376\ns_mul_i32 s{sT}, s{sM}, 14336\ns_add_u32 s{sFO}, s{sFO}, s{sT}\ns_lshl_b32 s{sT}, s{sW}, 12\ns_add_u32 s{sFO}, s{sFO}, s{sT}\ns_add_u32 s{sFO}, s{sFO}, {WS_F}")
sF1 = 59
e(f"s_cmp_eq_u32 s{sW}, 3\ns_cselect_b32 s{sF1}, 0, 2048")
for tt in range(2):
    e(f"s_add_u32 s{sT}, s{sFO}, {tt*114688}")
    e(f"buffer_store_dwordx4 v[28:31], v{vL16}, {srd(RWS)}, s{sT} offen sc1\nbuffer_store_dwordx4 v[28:31], v{vL16}, {srd(RWS)}, s{sT} offen offset:1024 sc1")
    e(f"s_add_u32 s{sT}, s{sT}, s{sF1}")
    e(f"buffer_store_dwordx4 v[28:31], v{vL16}, {srd(RWS)}, s{sT} offen sc1\nbuffer_store_dwordx4 v[28:31], v{vL16}, {srd(RWS)}, s{sT} offen offset:1024 sc1")
barrier()
ts()
L = k.label("norest")
e(f"s_cmp_lg_u32 s{sW}, 1\ns_cbranch_scc1 {L}")
e(f"v_mov_b32 v11, {L_REDA}")
for i in range(4):
    e(f"ds_read_b128 {vr(32+8*i,4)}, v11 offset:{64*i+16}\nds_read_b128 {vr(36+8*i,4)}, v11 offset:{64*i+32}")
e("s_waitcnt lgkmcnt(0)")
for i in range(8):
    e(f"v_add_f32 v{32+i}, v{32+i}, v{40+i}\nv_add_f32 v{48+i}, v{48+i}, v{56+i}")
for i in range(8):
    e(f"v_add_f32 v{32+i}, v{32+i}, v{48+i}")
round_bf16(list(range(32, 40)), 40)
e(f"s_and_b32 s{sT}, s2, 6\ns_cmp_eq_u32 s{sT}, 4\ns_cselect_b32 s{sT}, 1.0, 0")
for i in range(8):
    e(f"v_add_f32 v{32+i}, s{sT}, v{32+i}")
round_bf16(list(range(32, 40)), 40)
e(f"s_lshl_b32 s{sT}, s{sCR}, 1\ns_add_u32 s54, s{sCR}, {WS_MODB}\nv_mov_b32 v11, 0")
e("s_mov_b64 exec, 1")
e(f"buffer_store_dwordx4 v[32:35], v11, {srd(RWS)}, s{sT} offen sc1\nbuffer_store_dwordx4 v[36:39], v11, {srd(RWS)}, s{sT} offen offset:16 sc1")
e(f"buffer_store_dwordx4 v[40:43], v11, {srd(RWS)}, s54 offen sc1")
e("s_mov_b64 exec, -1")
e(f"{L}:")
aWQ = 0
e(f"s_and_b32 s{sT}, s{sW}, 1\ns_lshl_b32 s{sT}, s{sT}, 2")
e(f"v_lshrrev_b32 v25, 1, v23\nv_lshl_add_u32 v25, v21, 1, v25\nv_add_u32 v25, s{sT}, v25")
e("v_lshrrev_b32 v26, 1, v22\nv_lshlrev_b32 v26, 2, v26\nv_xor_b32 v25, v25, v26")
e("v_lshlrev_b32 v25, 4, v25\nv_lshl_add_u32 v25, v24, 7, v25\nv_and_b32 v26, 1, v23\nv_lshl_add_u32 v25, v26, 3, v25")
for ks in range(32):
    for i in range(2):
        e(f"ds_read_b64_tr_b16 {ar(aWQ+4*ks+2*i,2)}, v25 offset:{2048*ks+512*i}")
e(f"v_and_b32 v11, 31, v{vLANE}\nv_lshlrev_b32 v11, 3, v11\nv_add_u32 v11, {L_STAT}, v11")
vMU = [8, 9]
vRS = [12, 14]
vNB = [16, 18]
for s in range(2):
    for w_ in range(4):
        e(f"v_add_u32 v10, {w_*1024+s*512}, v11\nds_read2_b64 {vr(32+16*s+4*w_,4)}, v10 offset0:0 offset1:32")
e("s_waitcnt lgkmcnt(0)")
for s in range(2):
    b = 32 + 16 * s
    e(f"v_pk_add_f32 {vr(b,2)}, {vr(b,2)}, {vr(b+2,2)}\nv_pk_add_f32 {vr(b+4,2)}, {vr(b+4,2)}, {vr(b+6,2)}")
    e(f"v_pk_add_f32 {vr(b+8,2)}, {vr(b+8,2)}, {vr(b+10,2)}\nv_pk_add_f32 {vr(b+12,2)}, {vr(b+12,2)}, {vr(b+14,2)}")
    e(f"v_pk_add_f32 {vr(b,2)}, {vr(b,2)}, {vr(b+4,2)}\nv_pk_add_f32 {vr(b+8,2)}, {vr(b+8,2)}, {vr(b+12,2)}")
    e(f"v_pk_add_f32 {vr(b,2)}, {vr(b,2)}, {vr(b+8,2)}")
    e(f"v_mul_f32 v{vMU[s]}, 0x3b000000, v{b}\nv_mul_f32 v{b+1}, 0x3b000000, v{b+1}")
    e(f"v_fma_f32 v{b+1}, -v{vMU[s]}, v{vMU[s]}, v{b+1}\nv_max_f32 v{b+1}, 0, v{b+1}\nv_add_f32 v{b+1}, 0x3727c5ac, v{b+1}\nv_rsq_f32 v{vRS[s]}, v{b+1}")
    e(f"v_mul_f32 v{vNB[s]}, v{vMU[s]}, v{vRS[s]}\nv_sub_f32 v{vNB[s]}, 0, v{vNB[s]}")
for s in range(2):
    for i in range(32):
        x = vXP + 32 * s + i
        d = vXN + 64 * s + 2 * i
        e(f"v_lshlrev_b32 v{d}, 16, v{x}\nv_and_b32 v{d+1}, 0xffff0000, v{x}")
        e(f"v_pk_fma_f32 {vr(d,2)}, {vr(d,2)}, {vr(vRS[s],2)}, {vr(vNB[s],2)} op_sel_hi:[1,0,0]")
e(f"s_lshr_b32 s{sT}, s{sW}, 1\ns_xor_b32 s{sT}, s{sT}, s{sM}\ns_and_b32 s{sT}, s{sT}, 1\ns_cmp_lg_u32 s{sT}, 0\ns_cselect_b64 s[54:55], -1, 0")
e(f"v_cndmask_b32 v10, v{vMU[0]}, v{vMU[1]}, s[54:55]\nv_accvgpr_write_b32 a255, v10")
ts()

Lp = k.label("pmod")
e("v_lshlrev_b32 v10, 4, v0")
e(f"{Lp}:")
e(f"buffer_load_dwordx4 v[4:7], v10, {srd(RWS)}, 0 offen sc1\ns_waitcnt vmcnt(0)")
poll_check([4, 5, 6, 7], 11, Lp)
e(f"s_lshl_b32 s{sT}, s{sW}, 13\ns_add_u32 s{sT}, s{sT}, {L_WKV}\nv_add_u32 v10, s{sT}, v{vL16}")
e("ds_write_b128 v10, v[4:7]")
barrier()
ts()
e(f"s_lshr_b32 s{sT}, s{sW}, 1\ns_lshl_b32 s{sT}, s{sT}, 13\ns_and_b32 s54, s{sW}, 1\ns_lshl_b32 s54, s54, 9\ns_add_u32 s{sT}, s{sT}, s54\ns_add_u32 s{sT}, s{sT}, {L_WKV}")
e(f"v_lshrrev_b32 v11, 5, v{vLANE}\nv_lshlrev_b32 v11, 5, v11\nv_add_u32 v11, s{sT}, v11")
for s in range(2):
    e(f"s_and_b32 s{sT}, s{sM}, 1\ns_xor_b32 s{sT}, s{sT}, {s}\ns_lshl_b32 s{sT}, s{sT}, 15\ns_lshl_b32 s54, s{sW}, 13\ns_add_u32 s{sT}, s{sT}, s54\ns_add_u32 s{sT}, s{sT}, {L_H}\nv_add_u32 v{4+s}, s{sT}, v{vL16}")
aKV = 192


def hslot(s, variant):
    def rd(kk):
        b = 32 + 16 * (kk & 1)
        e(f"ds_read_b128 {vr(b,4)}, v11 offset:{64*kk}\nds_read_b128 {vr(b+4,4)}, v11 offset:{64*kk+16}")
        e(f"ds_read_b128 {vr(b+8,4)}, v11 offset:{16384+64*kk}\nds_read_b128 {vr(b+12,4)}, v11 offset:{16384+64*kk+16}")
    rd(0)
    for kk in range(8):
        if kk < 7:
            rd(kk + 1)
            e("s_waitcnt lgkmcnt(4)")
        else:
            e("s_waitcnt lgkmcnt(0)")
        b = 32 + 16 * (kk & 1)
        for p in range(4):
            d = vXN + 64 * s + 8 * kk + 2 * p
            e(f"v_pk_fma_f32 {vr(d,2)}, {vr(d,2)}, {vr(b+8+2*p,2)}, {vr(b+2*p,2)}")
        h = vXP + 32 * s + 4 * kk
        for p in range(4):
            d = vXN + 64 * s + 8 * kk + 2 * p
            e(f"v_cvt_pk_bf16_f32 v{h+p}, v{d}, v{d+1}")
        c = "0" if kk == 0 else ar(aKV, 16)
        if variant == "K":
            e(f"v_mfma_f32_32x32x16_bf16 {ar(aKV,16)}, {ar(aWKV+4*kk,4)}, {vr(h,4)}, {c}")
        elif variant == "V":
            e(f"v_mfma_f32_32x32x16_bf16 {ar(aKV,16)}, {vr(h,4)}, {ar(aWKV+4*kk,4)}, {c}")
    for kk in range(8):
        e(f"ds_write_b128 v{4+s}, {vr(vXP+32*s+4*kk,4)} offset:{1024*kk}")
    if variant in "KV":
        for q in range(2 if variant == "K" else 4):
            e(f"ds_write_b128 v10, {ar(aKV+4*q,4)} offset:{1024+1024*q}")


LV, LN_, LJ = k.label("hv"), k.label("hn"), k.label("hj")
e(f"s_cmp_ge_u32 s{sM}, 4\ns_cbranch_scc1 {LN_}\ns_cmp_ge_u32 s{sM}, 2\ns_cbranch_scc1 {LV}")
hslot(0, "K")
e(f"s_branch {LJ}\n{LV}:")
hslot(0, "V")
e(f"s_branch {LJ}\n{LN_}:")
hslot(0, "N")
e(f"{LJ}:")
barrier()
L = k.label("nofin")
e(f"s_cmp_ge_u32 s{sM}, 4\ns_cbranch_scc1 {L}")
e(f"s_lshr_b32 s{sT}, s{sM}, 1\ns_cmp_gt_u32 s{sW}, s{sT}\ns_cbranch_scc1 {L}")
e(f"s_lshl_b32 s{sT}, s{sW}, 11\ns_add_u32 s{sT}, s{sT}, {L_WKV+1024}\nv_add_u32 v6, s{sT}, v{vL16}")
for w_ in range(4):
    e(f"ds_read_b128 {vr(32+8*w_,4)}, v6 offset:{8192*w_}\nds_read_b128 {vr(36+8*w_,4)}, v6 offset:{8192*w_+1024}")
e("s_waitcnt lgkmcnt(0)")
for i in range(0, 8, 2):
    e(f"v_pk_add_f32 {vr(32+i,2)}, {vr(32+i,2)}, {vr(40+i,2)}\nv_pk_add_f32 {vr(48+i,2)}, {vr(48+i,2)}, {vr(56+i,2)}")
for i in range(0, 8, 2):
    e(f"v_pk_add_f32 {vr(32+i,2)}, {vr(32+i,2)}, {vr(48+i,2)}")
for i in range(4):
    e(f"v_cvt_pk_bf16_f32 v{40+i}, v{32+2*i}, v{33+2*i}")
e(f"s_mul_i32 s{sT}, s{sW}, -256\ns_cmp_lt_u32 s{sM}, 2\ns_cselect_b32 s{sT}, 1024, s{sT}\ns_cselect_b64 exec, -1, s[{sMASKV}:{sMASKV+1}]\ns_add_u32 s{sT}, s{sT}, s{sKVT}")
e(f"buffer_store_dwordx4 v[40:43], v{vL16}, {srd(RWS)}, s{sT} offen sc1")
e("s_mov_b64 exec, -1")
e(f"{L}:")
ts()
hslot(1, "N")
e("s_waitcnt vmcnt(0)")
barrier()
L = k.label("nodone")
e(f"s_cmp_lg_u32 s{sW}, 2\ns_cbranch_scc1 {L}")
e(f"s_lshl_b32 s{sT}, s2, 2\ns_add_u32 s{sT}, s{sT}, {WS_DONE}\nv_mov_b32 v5, 0\nv_mov_b32 v4, 1\ns_mov_b64 exec, 1")
e(f"buffer_store_dword v4, v5, {srd(RWS)}, s{sT} offen sc1\ns_mov_b64 exec, -1")
e(f"{L}:")

vQA, vQB, vK, vV0, vV1, vPA, vPB, vSA, vSB, vOA, vOB = 4, 8, 12, 16, 20, 24, 32, 40, 56, 72, 88
e(f"s_lshr_b32 s{sT}, s{sW}, 1\ns_lshl_b32 s{sT}, s{sT}, 15\ns_add_u32 s{sT}, s{sT}, {L_H}\nv_add_u32 v{vADR}, s{sT}, v{vL16}")
NB = 8
vQACC = 40
for ks in range(NB):
    e(f"ds_read_b128 {vr(64+4*ks,4)}, v{vADR} offset:{1024*ks}")
for ks in range(32):
    rem = min(NB - 1, 31 - ks)
    e(f"s_waitcnt lgkmcnt({rem})")
    c = "0" if ks == 0 else vr(vQACC, 16)
    e(f"v_mfma_f32_32x32x16_bf16 {vr(vQACC,16)}, {ar(aWQ+4*ks,4)}, {vr(64+4*(ks%NB),4)}, {c}")
    if ks + NB < 32:
        e(f"ds_read_b128 {vr(64+4*(ks%NB),4)}, v{vADR} offset:{1024*(ks+NB)}")
QS = 0x3eb8aa3b
for i in range(16):
    e(f"v_mul_f32 v{vQACC+i}, {QS:#x}, v{vQACC+i}")
for i in range(8):
    e(f"v_cvt_pk_bf16_f32 v{vQA+i}, v{vQACC+2*i}, v{vQACC+2*i+1}")
ts()

Lp = k.label("pkv")
e(f"{Lp}:")
e(f"s_lshl_b32 s{sT}, s{sW}, 15\ns_add_u32 s{sT}, s{sT}, {WS_KV}")
for i in range(32):
    e(f"buffer_load_dwordx4 {vr(128+4*i,4)}, v{vL16}, {srd(RWS)}, s{sT} offen offset:{1024*(i%4)} sc1")
    if i % 4 == 3 and i < 31:
        e(f"s_add_u32 s{sT}, s{sT}, 4096")
e("s_waitcnt vmcnt(0)")
poll_check([128 + 4 * i for i in range(32)], 12, Lp)
barrier()
e(f"s_lshl_b32 s{sT}, s{sW}, 15\ns_add_u32 s{sT}, s{sT}, {L_KV}\nv_add_u32 v{vADR}, s{sT}, v{vL16}")
for i in range(32):
    e(f"ds_write_b128 v{vADR}, {vr(128+4*i,4)} offset:{1024*i}")
barrier()
ts()

for i in range(8):
    e(f"v_mov_b32 v{vV0+i}, 0x3f803f80")
for i in range(16):
    e(f"v_mov_b32 v{vOA+i}, 0\nv_mov_b32 v{vOB+i}, 0")
for i in range(8):
    e(f"v_mov_b32 v{vPB+i}, 0")
e(f"v_mov_b32 v{vADR}, v{vL16}")
e(f"ds_read_b128 {vr(vK,4)}, v{vADR} offset:1280\ns_waitcnt lgkmcnt(0)")
e(f"v_mfma_f32_32x32x16_bf16 {vr(vSA,16)}, {vr(vK,4)}, {vr(vQA,4)}, 0")
UNR = 4


def half(S, P, mf, extra):
    out = []
    seq = []
    for i in range(16):
        seq.append(f"v_exp_f32 v{S+i}, v{S+i}")
        if i % 2 == 1 and i >= 3:
            j = (i - 3) // 2
            seq.append(f"v_cvt_pk_bf16_f32 v{P+j}, v{S+2*j}, v{S+2*j+1}")
    seq.append(f"v_cvt_pk_bf16_f32 v{P+7}, v{S+14}, v{S+15}")
    ins = dict(mf)
    for pos, l in extra:
        ins.setdefault(pos, [])
        ins[pos] = ins[pos] + l
    for i, s_ in enumerate(seq):
        if i in ins:
            out += ins[i]
        out.append(s_)
    return out


def mf(d, a, b, c=None):
    c = c if c is not None else vr(d, 16)
    return f"v_mfma_f32_32x32x16_bf16 {vr(d,16)}, {vr(a,4)}, {vr(b,4)}, {c}"


LA = k.label("att")
body = [f"{LA}:"]
for u in range(UNR):
    o = 2048 * u
    body += half(vSA, vPA,
                 {0: [mf(vSB, vK, vQB, "0")], 4: [mf(vOB, vV0, vPB)], 9: [mf(vOB, vV1, vPB + 4)]},
                 [(2, [f"ds_read_b128 {vr(vK,4)}, v{vADR} offset:{o+2048+1280}"]),
                  (11, [f"s_mov_b64 exec, s[{sMASKV}:{sMASKV+1}]",
                        f"ds_read_b128 {vr(vV0,4)}, v{vADR} offset:{o+256}",
                        f"ds_read_b128 {vr(vV1,4)}, v{vADR} offset:{o}",
                        "s_mov_b64 exec, -1"])])
    ex = []
    if u == UNR - 1:
        ex = [(18, [f"v_add_u32 v{vADR}, {2048*UNR}, v{vADR}"])]
    body += half(vSB, vPB,
                 {0: ["s_waitcnt lgkmcnt(2)", mf(vSA, vK, vQA, "0")], 9: ["s_waitcnt lgkmcnt(0)", mf(vOA, vV0, vPA)], 14: [mf(vOA, vV1, vPA + 4)]},
                 ex)
e(f"s_mov_b32 s{sT}, 0")
k.loop(body, [f"s_add_u32 s{sT}, s{sT}, 1", f"s_cmp_lt_u32 s{sT}, {64//UNR}", f"s_cbranch_scc1 {LA}"])
e(mf(vOB, vV0, vPB))
e(mf(vOB, vV1, vPB + 4))
ts()
for (O, P) in ((vOA, vPA), (vOB, vPB)):
    e(f"v_rcp_f32 v{O}, v{O}")
    for i in range(8):
        e(f"v_mul_f32 v{O+8+i}, v{O+8+i}, v{O}")
    for i in range(4):
        e(f"v_cvt_pk_bf16_f32 v{P+i}, v{O+8+2*i}, v{O+9+2*i}")
e(f"s_add_u32 s{sT}, s{sOY}, {WS_O}")
e(f"buffer_store_dwordx4 {vr(vPA,4)}, v{vL16}, {srd(RWS)}, s{sT} offen sc1\nbuffer_store_dwordx4 {vr(vPB,4)}, v{vL16}, {srd(RWS)}, s{sT} offen offset:1024 sc1")

Lp = k.label("pdone")
e(f"s_mov_b32 s{sT}, {WS_DONE}")
e(f"{Lp}:")
e(f"buffer_load_dwordx4 v[4:7], v{vL16}, {srd(RWS)}, s{sT} offen sc1\ns_waitcnt vmcnt(0)")
poll_check([4, 5, 6, 7], 8, Lp)
for a in range(2):
    e(f"s_and_b32 s{sT}, s{sW}, 1\ns_xor_b32 s{sT}, s{sT}, {a}\ns_lshl_b32 s54, s{sM}, 1\ns_add_u32 s{sT}, s{sT}, s54\ns_lshl_b32 s{sT}, s{sT}, 15\ns_lshl_b32 s54, s{sW}, 13\ns_add_u32 s{sT}, s{sT}, s54\ns_add_u32 s{sT}, s{sT}, {WS_WO}")
    for kk in range(8):
        e(f"buffer_load_dwordx4 {ar(32*a+4*kk,4)}, v{vL16}, {srd(RWS)}, s{sT} offen offset:{1024*(kk%4)} sc1")
        if kk == 3:
            e(f"s_add_u32 s{sT}, s{sT}, 4096")
vX1, vGA, vCB, vGB = 4, 20, 36, 52
sFB = 52
e(f"s_lshl_b32 s{sFB}, s{sM}, 6\ns_and_b32 s{sT}, s{sW}, 1\ns_lshl_b32 s{sT}, s{sT}, 5\ns_add_u32 s{sFB}, s{sFB}, s{sT}")
vTOK = 68
e(f"v_and_b32 v{vTOK}, 31, v{vLANE}\nv_lshlrev_b32 v{vTOK}, 10, v{vTOK}\nv_lshrrev_b32 v69, 5, v{vLANE}\nv_lshl_add_u32 v{vTOK}, v69, 4, v{vTOK}\nv_lshlrev_b32 v69, 5, v69")
sXO = 53
e(f"s_lshl_b32 s{sXO}, s{sG}, 16\ns_lshr_b32 s{sT}, s{sW}, 1\ns_lshl_b32 s{sT}, s{sT}, 15\ns_add_u32 s{sXO}, s{sXO}, s{sT}\ns_lshl_b32 s{sT}, s{sFB}, 1\ns_add_u32 s{sXO}, s{sXO}, s{sT}")
e(f"buffer_load_dwordx4 v[72:75], v{vTOK}, {srd(RX)}, s{sXO} offen\nbuffer_load_dwordx4 v[76:79], v{vTOK}, {srd(RX)}, s{sXO} offen offset:32")
for (reg, col) in ((vGA, 1024), (vCB, 2048), (vGB, 2560)):
    e(f"s_lshl_b32 s{sT}, s{sFB}, 2\ns_add_u32 s{sT}, s{sT}, {col*4}")
    for q in range(4):
        e(f"buffer_load_dwordx4 {vr(reg+4*q,4)}, v69, {srd(RWS)}, s{sT} offen offset:{64*(q>>1)+16*(q&1)} sc1")
Lp = k.label("po")
e(f"{Lp}:")


def gather16(base, dst):
    for b_ in range(2):
        e(f"s_lshr_b32 s{sT}, s{sW}, 1\ns_xor_b32 s{sT}, s{sT}, {b_}\ns_lshl_b32 s{sT}, s{sT}, 15\ns_lshl_b32 s54, s{sG}, 16\ns_add_u32 s{sT}, s{sT}, s54\ns_lshl_b32 s54, s{sW}, 13\ns_add_u32 s{sT}, s{sT}, s54\ns_add_u32 s{sT}, s{sT}, {base}")
        for kk in range(8):
            e(f"buffer_load_dwordx4 {vr(dst+32*b_+4*kk,4)}, v{vL16}, {srd(RWS)}, s{sT} offen offset:{1024*(kk%4)} sc1")
            if kk == 3:
                e(f"s_add_u32 s{sT}, s{sT}, 4096")


gather16(WS_O, 128)
e("s_waitcnt vmcnt(0)")
poll_check([128 + 4 * i for i in range(16)], 70, Lp)
ts()
vACC = 192
for kk in range(8):
    for b_ in range(2):
        for a in range(2):
            d = vACC + 16 * (a + 2 * b_)
            c = "0" if kk == 0 else vr(d, 16)
            e(f"v_mfma_f32_32x32x16_bf16 {vr(d,16)}, {ar(32*a+4*kk,4)}, {vr(128+32*b_+4*kk,4)}, {c}")


def reduce4():
    barrier()
    for d in range(1, 4):
        e(f"s_xor_b32 s{sT}, s{sW}, {d}\ns_mul_i32 s{sT}, s{sT}, 12288\nv_add_u32 v70, s{sT}, v{vL16}")
        for q in range(4):
            e(f"ds_write_b128 v70, {vr(vACC+16*d+4*q,4)} offset:{4096*(d-1)+1024*q}")
    barrier()
    e(f"s_mul_i32 s{sT}, s{sW}, 12288\nv_add_u32 v70, s{sT}, v{vL16}")
    for i in range(12):
        e(f"ds_read_b128 {vr(vACC+16+4*i,4)}, v70 offset:{1024*i}")
    e("s_waitcnt lgkmcnt(0)")
    for i in range(0, 16, 2):
        e(f"v_pk_add_f32 {vr(vACC+i,2)}, {vr(vACC+i,2)}, {vr(vACC+16+i,2)}\nv_pk_add_f32 {vr(vACC+32+i,2)}, {vr(vACC+32+i,2)}, {vr(vACC+48+i,2)}")
    for i in range(0, 16, 2):
        e(f"v_pk_add_f32 {vr(vACC+i,2)}, {vr(vACC+i,2)}, {vr(vACC+32+i,2)}")


reduce4()
for i in range(8):
    e(f"v_lshlrev_b32 v{vX1+2*i}, 16, v{72+i}\nv_and_b32 v{vX1+2*i+1}, 0xffff0000, v{72+i}")
for i in range(0, 16, 2):
    e(f"v_pk_fma_f32 {vr(vX1+i,2)}, {vr(vACC+i,2)}, {vr(vGA+i,2)}, {vr(vX1+i,2)}")
round_bf16(list(range(vX1, vX1 + 16)), 72)
e("v_accvgpr_read_b32 v70, a255")
for i in range(16):
    e(f"v_sub_f32 v{vACC+i}, v{vX1+i}, v70")
e(f"v_add_f32 v80, v{vACC}, v{vACC+1}\nv_mul_f32 v81, v{vACC}, v{vACC}\nv_fmac_f32 v81, v{vACC+1}, v{vACC+1}")
for i in range(2, 16):
    e(f"v_add_f32 v80, v80, v{vACC+i}\nv_fmac_f32 v81, v{vACC+i}, v{vACC+i}")
e("v_mov_b32 v82, v80\nv_mov_b32 v83, v81")
e("v_permlane32_swap_b32 v80, v82\nv_permlane32_swap_b32 v81, v83")
e("v_add_f32 v80, v80, v82\nv_add_f32 v81, v81, v83")
for i in range(0, 16, 2):
    e(f"v_pk_mul_f32 {vr(vACC+i,2)}, {vr(vACC+i,2)}, {vr(vCB+i,2)}")
for i in range(8):
    e(f"v_cvt_pk_bf16_f32 v{72+i}, v{vACC+2*i}, v{vACC+2*i+1}")
e(f"s_add_u32 s{sT}, s{sOY}, {WS_Y}")
e(f"buffer_store_dwordx4 v[72:75], v{vL16}, {srd(RWS)}, s{sT} offen sc1\nbuffer_store_dwordx4 v[76:79], v{vL16}, {srd(RWS)}, s{sT} offen offset:1024 sc1")
e(f"v_lshlrev_b32 v70, 3, v{vLANE}\ns_mov_b32 exec_hi, 0")
e(f"buffer_store_dwordx2 v[80:81], v70, {srd(RWS)}, s{sSTO} offen sc1\ns_mov_b64 exec, -1")
ts()

e(f"s_mul_i32 s{sT}, s{sM}, 7\ns_lshl_b32 s54, s{sW}, 1\ns_add_u32 s{sT}, s{sT}, s54\ns_lshl_b32 s{sT}, s{sT}, 15\ns_add_u32 s{sT}, s{sT}, {WS_W1}")
e(f"s_lshl_b32 s55, s{sF1}, 4\ns_add_u32 s55, s55, s{sT}")
for i in range(2):
    sreg = sT if i == 0 else 55
    for ks in range(32):
        e(f"buffer_load_dwordx4 {ar(128*i+4*ks,4)}, v{vL16}, {srd(RWS)}, s{sreg} offen offset:{1024*(ks%4)} sc1")
        if ks % 4 == 3 and ks < 31:
            e(f"s_add_u32 s{sreg}, s{sreg}, 4096")
    e("s_waitcnt vmcnt(0)")
e(f"v_and_b32 v70, 1, v{vLANE}\nv_lshlrev_b32 v70, 10, v70\nv_lshrrev_b32 v71, 5, v{vLANE}\nv_lshlrev_b32 v71, 4, v71\nv_sub_u32 v70, v71, v70\nv_add_u32 v70, {WS_MODB+4096}, v70")
for ks in range(32):
    e(f"buffer_load_dwordx4 {vr(128+4*ks,4)}, v70, {srd(RWS)}, 0 offen offset:{32*ks} sc1")
e("s_waitcnt vmcnt(0)")
vCS = 72
for ks in range(32):
    for i in range(2):
        d = vCS + 16 * i
        c = "0" if ks == 0 else vr(d, 16)
        e(f"v_mfma_f32_32x32x16_bf16 {vr(d,16)}, {vr(128+4*ks,4)}, {ar(128*i+4*ks,4)}, {c}")
vAP = 104
e(f"v_cmp_gt_u32 s[54:55], 32, v{vLANE}")
e("s_mov_b32 s98, 0x07060302")
for i in range(2):
    cs, bi = vCS + 16 * i, vCS + 16 * i + 1
    t = vCS + 16 * i + 2
    e(f"v_cvt_pk_bf16_f32 v{t}, v{cs}, v{bi}")
    e(f"v_lshlrev_b32 v{t+1}, 16, v{t}\nv_and_b32 v{t+2}, 0xffff0000, v{t}")
    e(f"v_sub_f32 v{cs}, v{cs}, v{t+1}\nv_sub_f32 v{bi}, v{bi}, v{t+2}")
    e(f"v_cvt_pk_bf16_f32 v{t+3}, v{t+1}, v{t+1}")
    e(f"v_cvt_pk_bf16_f32 v{t+4}, v{cs}, v{t+2}")
    e(f"v_cvt_pk_bf16_f32 v{t+5}, v{t+2}, v{bi}")
    for q in range(3):
        e(f"v_cndmask_b32 v{vAP+4*i+q}, 0, v{t+3+q}, s[54:55]")
    e(f"v_mov_b32 v{vAP+4*i+3}, 0")
L_Y = 0
L_ST2 = 65536
Lp = k.label("py")
e(f"{Lp}:")
gather16(WS_Y, 128)
e(f"s_lshl_b32 s{sT}, s{sG}, 13\ns_and_b32 s54, s{sW}, 1\ns_lshl_b32 s54, s54, 12\ns_add_u32 s{sT}, s{sT}, s54\ns_lshr_b32 s54, s{sW}, 1\ns_lshl_b32 s54, s54, 11\ns_add_u32 s{sT}, s{sT}, s54\ns_add_u32 s{sT}, s{sT}, {WS_ST}")
e(f"v_and_b32 v70, 31, v{vLANE}\nv_lshlrev_b32 v70, 3, v70\nv_lshrrev_b32 v71, 5, v{vLANE}\nv_lshl_add_u32 v70, v71, 10, v70")
for q in range(4):
    e(f"buffer_load_dwordx2 {vr(192+2*q,2)}, v70, {srd(RWS)}, s{sT} offen offset:{256*q} sc1")
e("s_waitcnt vmcnt(0)")
poll_check([128 + 4 * i for i in range(16)] + list(range(192, 200)), 71, Lp)
ts()
barrier()
for b_ in range(2):
    e(f"s_lshr_b32 s{sT}, s{sW}, 1\ns_xor_b32 s{sT}, s{sT}, {b_}\ns_lshl_b32 s{sT}, s{sT}, 15\ns_lshl_b32 s54, s{sW}, 13\ns_add_u32 s{sT}, s{sT}, s54\nv_add_u32 v70, s{sT}, v{vL16}")
    for kk in range(8):
        e(f"ds_write_b128 v70, {vr(128+32*b_+4*kk,4)} offset:{1024*kk}")
e("v_pk_add_f32 v[192:193], v[192:193], v[194:195]\nv_pk_add_f32 v[196:197], v[196:197], v[198:199]\nv_pk_add_f32 v[192:193], v[192:193], v[196:197]")
e(f"s_and_b32 s{sT}, s{sW}, 1\ns_lshl_b32 s{sT}, s{sT}, 10\ns_lshr_b32 s54, s{sW}, 1\ns_lshl_b32 s54, s54, 9\ns_add_u32 s{sT}, s{sT}, s54\ns_add_u32 s{sT}, s{sT}, {L_ST2}\nv_lshl_add_u32 v70, v{vLANE}, 3, s{sT}")
e("ds_write_b64 v70, v[192:193]")
barrier()
vBP = 112
vRSTD = [120, 121]
vNRL = [122, 123]
e(f"v_and_b32 v70, 31, v{vLANE}\nv_lshlrev_b32 v70, 3, v70\nv_add_u32 v70, {L_ST2}, v70\nv_add_u32 v71, 1024, v70")
for tt in range(2):
    a_ = 70 + tt
    e(f"ds_read2_b64 {vr(192+8*tt,4)}, v{a_} offset0:0 offset1:32\nds_read2_b64 {vr(196+8*tt,4)}, v{a_} offset0:64 offset1:96")
e("s_waitcnt lgkmcnt(0)")
e(f"v_cmp_gt_u32 s[54:55], 32, v{vLANE}")
for tt in range(2):
    b = 192 + 8 * tt
    e(f"v_pk_add_f32 {vr(b,2)}, {vr(b,2)}, {vr(b+2,2)}\nv_pk_add_f32 {vr(b+4,2)}, {vr(b+4,2)}, {vr(b+6,2)}\nv_pk_add_f32 {vr(b,2)}, {vr(b,2)}, {vr(b+4,2)}")
    e(f"v_mul_f32 v{b}, 0xbb000000, v{b}\nv_mul_f32 v{b+1}, 0x3b000000, v{b+1}")
    e(f"v_fma_f32 v{b+1}, -v{b}, v{b}, v{b+1}\nv_max_f32 v{b+1}, 0, v{b+1}\nv_add_f32 v{b+1}, 0x3727c5ac, v{b+1}")
    e(f"v_rsq_f32 v{vRSTD[tt]}, v{b+1}\nv_mul_f32 v{b+1}, v{b+1}, v{vRSTD[tt]}")
    e(f"v_mul_f32 v{vNRL[tt]}, 0xbfb8aa3b, v{vRSTD[tt]}")
    t = b + 2
    e(f"v_cvt_pk_bf16_f32 v{t}, v{b}, v{b+1}")
    e(f"v_lshlrev_b32 v{t+1}, 16, v{t}\nv_and_b32 v{t+2}, 0xffff0000, v{t}")
    e(f"v_sub_f32 v{b}, v{b}, v{t+1}\nv_sub_f32 v{b+1}, v{b+1}, v{t+2}")
    e(f"v_cvt_pk_bf16_f32 v{t+3}, v{t+1}, v{b}")
    e(f"v_cvt_pk_bf16_f32 v{t+4}, v{b+1}, v{t+2}")
    e(f"v_cndmask_b32 v{vBP+4*tt}, 0, v{t+3}, s[54:55]\nv_cndmask_b32 v{vBP+4*tt+1}, 0, v{t}, s[54:55]\nv_cndmask_b32 v{vBP+4*tt+2}, 0, v{t+4}, s[54:55]\nv_mov_b32 v{vBP+4*tt+3}, 0")
for tt in range(2):
    e(f"v_add_u32 v70, {L_Y+32768*tt}, v{vL16}")
    for ks in range(NB):
        e(f"ds_read_b128 {vr(128+4*ks,4)}, v70 offset:{1024*ks}")
    for i in range(2):
        e(f"v_mfma_f32_32x32x16_bf16 {vr(vACC+16*i,16)}, {vr(vAP+4*i,4)}, {vr(vBP+4*tt,4)}, 0")
    for ks in range(32):
        rem = min(NB - 1, 31 - ks)
        e(f"s_waitcnt lgkmcnt({rem})")
        for i in range(2):
            d = vACC + 16 * i
            e(f"v_mfma_f32_32x32x16_bf16 {vr(d,16)}, {ar(128*i+4*ks,4)}, {vr(128+4*(ks%NB),4)}, {vr(d,16)}")
        if ks + NB < 32:
            e(f"ds_read_b128 {vr(128+4*(ks%NB),4)}, v70 offset:{1024*(ks+NB)}")
    for i in range(2):
        d = vACC + 16 * i
        t = vACC + 32
        for r in range(16):
            e(f"v_mul_f32 v{t+r}, v{vNRL[tt]}, v{d+r}")
        for r in range(16):
            e(f"v_exp_f32 v{t+r}, v{t+r}")
        for r in range(16):
            e(f"v_add_f32 v{t+r}, 1.0, v{t+r}\nv_mul_f32 v{d+r}, v{vRSTD[tt]}, v{d+r}")
        for r in range(16):
            e(f"v_rcp_f32 v{t+r}, v{t+r}")
        for r in range(16):
            e(f"v_mul_f32 v{d+r}, v{d+r}, v{t+r}")
        for r in range(8):
            e(f"v_cvt_pk_bf16_f32 v{t+16+r}, v{d+2*r}, v{d+2*r+1}")
        e(f"s_add_u32 s{sT}, s{sFO}, {tt*114688}")
        if i == 1:
            e(f"s_add_u32 s{sT}, s{sT}, s{sF1}")
        e(f"buffer_store_dwordx4 {vr(t+16,4)}, v{vL16}, {srd(RWS)}, s{sT} offen sc1\nbuffer_store_dwordx4 {vr(t+20,4)}, v{vL16}, {srd(RWS)}, s{sT} offen offset:1024 sc1")
ts()

for a in range(2):
    e(f"s_and_b32 s{sT}, s{sW}, 1\ns_xor_b32 s{sT}, s{sT}, {a}\ns_lshl_b32 s54, s{sM}, 1\ns_add_u32 s{sT}, s{sT}, s54\ns_mul_i32 s{sT}, s{sT}, {112*1024}\ns_mul_i32 s54, s{sW}, {28*1024}\ns_add_u32 s{sT}, s{sT}, s54\ns_add_u32 s{sT}, s{sT}, {WS_W2}")
    for kk in range(28):
        e(f"buffer_load_dwordx4 {ar(112*a+4*kk,4)}, v{vL16}, {srd(RWS)}, s{sT} offen offset:{1024*(kk%4)} sc1")
        if kk % 4 == 3 and kk < 27:
            e(f"s_add_u32 s{sT}, s{sT}, 4096")
vFB = 72
for ch in range(4):
    Lp = k.label("pf")
    e(f"{Lp}:")
    for b_ in range(2):
        e(f"s_lshr_b32 s{sT}, s{sW}, 1\ns_xor_b32 s{sT}, s{sT}, {b_}\ns_mul_i32 s{sT}, s{sT}, 114688\ns_mul_i32 s54, s{sG}, 229376\ns_add_u32 s{sT}, s{sT}, s54\ns_mul_i32 s54, s{sW}, {28*1024}\ns_add_u32 s{sT}, s{sT}, s54\ns_add_u32 s{sT}, s{sT}, {WS_F+ch*7*1024}")
        for kk in range(7):
            e(f"buffer_load_dwordx4 {vr(vFB+28*b_+4*kk,4)}, v{vL16}, {srd(RWS)}, s{sT} offen offset:{1024*(kk%4)} sc1")
            if kk == 3:
                e(f"s_add_u32 s{sT}, s{sT}, 4096")
    e("s_waitcnt vmcnt(0)")
    poll_check([vFB + 4 * i for i in range(14)], 70, Lp)
    for kk in range(7):
        for b_ in range(2):
            for a in range(2):
                d = vACC + 16 * (a + 2 * b_)
                c = "0" if (kk == 0 and ch == 0) else vr(d, 16)
                e(f"v_mfma_f32_32x32x16_bf16 {vr(d,16)}, {ar(112*a+4*(7*ch+kk),4)}, {vr(vFB+28*b_+4*kk,4)}, {c}")
ts()
reduce4()
for i in range(0, 16, 2):
    e(f"v_pk_fma_f32 {vr(vX1+i,2)}, {vr(vACC+i,2)}, {vr(vGB+i,2)}, {vr(vX1+i,2)}")
for i in range(8):
    e(f"v_cvt_pk_bf16_f32 v{72+i}, v{vX1+2*i}, v{vX1+2*i+1}")
mk_srd(RA, sOUT, 2048 * 512 * 2)
e(f"buffer_store_dwordx4 v[72:75], v{vTOK}, {srd(RA)}, s{sXO} offen\nbuffer_store_dwordx4 v[76:79], v{vTOK}, {srd(RA)}, s{sXO} offen offset:32")
if TS:
    e("s_waitcnt vmcnt(0)")
    ts()
    e("s_waitcnt lgkmcnt(0)")
    e(f"s_lshl_b32 s{sT}, s2, 2\ns_add_u32 s{sT}, s{sT}, s{sW}\ns_lshl_b32 s{sT}, s{sT}, 7\ns_add_u32 s{sT}, s{sT}, {WS_TS}\nv_mov_b32 v5, 0\ns_mov_b64 exec, 1")
    for i in range(_ts[0]):
        e(f"v_mov_b32 v4, s{sTS+2*i}\nbuffer_store_dword v4, v5, {srd(RWS)}, s{sT} offen offset:{4*i}")
    e(f"v_mov_b32 v4, s{sCNT}\nbuffer_store_dword v4, v5, {srd(RWS)}, s{sT} offen offset:124")
e(f"{END}:\ns_endpgm")

k.accum_offset = 256
code, desc = k.finish(256)
hdr = f"; adaLN + MQA attention + SiLU MLP, single persistent kernel (generated)\n; @launch grid=(256,1,1) block=(256,1,1) lds={LDS_BYTES}\n"
out = hdr + '.amdgcn_target "amdgcn-amd-amdhsa--gfx950"\n.text\n' + code + '.section .rodata,"a"\n' + desc
path = sys.argv[1] if len(sys.argv) > 1 else "adaLN_cond__grouped_kv_mqa__dense_activation_silu__prompt.s"
open(path, "w").write(out)
print(k.info)
```
